```python
import torch

def _softmax(x, axis=-1):
    return torch.softmax(x, dim=axis)
def _gelu(x):
    return torch.nn.functional.gelu(x, approximate="tanh")
def _silu(x):
    return torch.nn.functional.silu(x)
def _sigmoid(x):
    return torch.sigmoid(x)
def _layernorm(x, axis=-1, eps=1e-5):
    m = x.mean(dim=axis, keepdim=True)
    v = x.var(dim=axis, keepdim=True, unbiased=False)
    return (x - m) / torch.sqrt(v + eps)
def _scatter_add(tgt, idx, src, axis=0):
    return tgt.clone().index_add_(axis, idx, src)
def _segment_sum(src, seg, n):
    out = torch.zeros((n,) + src.shape[1:], dtype=src.dtype)
    return out.index_add_(0, seg, src)
def _pad(x, pw):
    flat = tuple(v for pair in reversed(pw) for v in pair)
    return torch.nn.functional.pad(x, flat)

kernel_name = 'standalone__gqa_softmax__near_ridge'

def setup_inputs():

    _w = (lambda a: (lambda t: t.to(torch.bfloat16) if t.is_floating_point() else t)(torch.as_tensor(a)))
    B, Hq, Hkv, Sq, Sk, D = 8, 16, 8, 368, 512, 256
    return {
        "q": _w((lambda *s: torch.randn(*s, dtype=torch.bfloat16) * 0.8)(B, Hq, Sq, D)),
        "k": _w((lambda *s: torch.randn(*s, dtype=torch.bfloat16) * 0.8)(B, Hkv, Sk, D)),
        "v": _w((lambda *s: torch.randn(*s, dtype=torch.bfloat16) * 0.05)(B, Hkv, Sk, D)),
    }

def reference(q, k, v):
    B, Hq, Sq, D = q.shape
    Hkv = k.shape[1]
    rep = Hq // Hkv
    k = (lambda x, n, axis: torch.repeat_interleave(x, n, dim=axis))(k, rep, axis=1)
    v = (lambda x, n, axis: torch.repeat_interleave(x, n, dim=axis))(v, rep, axis=1)
    scale = D ** -0.5
    scores = torch.einsum("bhqd,bhkd->bhqk", q, k) * scale
    p = _softmax(scores, axis=-1)
    return torch.einsum("bhqk,bhkd->bhqd", p, v)
```

```python
HEADER = """; Kernarg layout for this problem (48 bytes, ptrs only, base s[0:1]):
; @launch grid=({grid},1,1) block=({block},1,1) lds={lds}
.amdgcn_target "amdgcn-amd-amdhsa--gfx950"
.text
.globl standalone__gqa_softmax__near_ridge_kernel
.p2align 8
.type standalone__gqa_softmax__near_ridge_kernel,@function
standalone__gqa_softmax__near_ridge_kernel:
"""
FOOTER = """
.section .rodata,"a"
.p2align 6
.amdhsa_kernel standalone__gqa_softmax__near_ridge_kernel
  .amdhsa_next_free_vgpr {nvgpr}
  .amdhsa_next_free_sgpr {nsgpr}
  .amdhsa_accum_offset {accum}
  .amdhsa_group_segment_fixed_size 0
  .amdhsa_kernarg_size 48
  .amdhsa_user_sgpr_count 2
  .amdhsa_user_sgpr_kernarg_segment_ptr 1
  .amdhsa_system_sgpr_workgroup_id_x 1
{extra}.end_amdhsa_kernel
"""
class Asm:
    def __init__(self):
        self.lines = []
    def __call__(self, s):
        for l in s.strip("\n").split("\n"):
            self.lines.append("    " + l.strip() if not l.strip().endswith(":") else l.strip())
    def text(self, grid=256, block=256, lds=163840, nvgpr=512, nsgpr=102, accum=256, extra=""):
        return HEADER.format(grid=grid, block=block, lds=lds) + "\n".join(self.lines) + "\n" + FOOTER.format(nvgpr=nvgpr, nsgpr=nsgpr, accum=accum, extra=extra)
```

```python
import sys
from asmlib import Asm
def gen(N=24, stores="interleave", chunk=128, xcdmap=True, nt="", stf="", uniq=False, lds=163840, nvgpr=512, same=False):
    a = Asm()
    a(f"""
    s_cmp_ge_u32 s2, 256
    s_cbranch_scc1 L_end
    s_memrealtime s[40:41]
    s_memtime s[42:43]
    s_load_dwordx4 s[4:7], s[0:1], 0
    s_load_dwordx4 s[8:11], s[0:1], 16
    s_load_dwordx2 s[12:13], s[0:1], 40
    """)
    if xcdmap:
        a("""
        s_and_b32 s14, s2, 7
        s_lshr_b32 s15, s2, 3
        s_lshl_b32 s14, s14, 3
        s_lshr_b32 s16, s15, 2
        s_add_u32 s14, s14, s16
        s_and_b32 s15, s15, 3
        """)
    else:
        a("""
        s_lshr_b32 s14, s2, 2
        s_and_b32 s15, s2, 3
        """)
    if same: a("s_and_b32 s14, s14, 0x38\ns_mov_b32 s15, 0")
    a(f"""
    s_mul_i32 s16, s14, 736
    s_mul_i32 s17, s15, 184
    s_add_u32 s16, s16, s17
    s_lshl_b32 s16, s16, 9
    s_lshl_b32 s17, s14, 18
    v_lshrrev_b32 v1, 6, v0
    s_nop 0
    v_readfirstlane_b32 s18, v1
    v_and_b32 v2, 63, v0            ; lane
    s_waitcnt lgkmcnt(0)
    s_add_u32 s20, s4, s16
    s_addc_u32 s21, s5, 0
    s_mov_b32 s22, {184*512}
    s_mov_b32 s23, 0x20000
    s_add_u32 s24, s6, s17
    s_addc_u32 s25, s7, 0
    s_mov_b32 s26, {512*512}
    s_mov_b32 s27, 0x20000
    s_add_u32 s28, s8, s17
    s_addc_u32 s29, s9, 0
    s_mov_b32 s30, {512*512}
    s_mov_b32 s31, 0x20000
    s_add_u32 s32, s10, s16
    s_addc_u32 s33, s11, 0
    s_mov_b32 s34, {184*512}
    s_mov_b32 s35, 0x20000
    """)
    lpr = chunk // 16
    rpi = 64 // lpr
    import math
    sh = int(math.log2(lpr))
    a(f"""
    v_lshrrev_b32 v3, {sh}, v2
    v_lshlrev_b32 v3, 9, v3
    v_and_b32 v4, {lpr-1}, v2
    v_lshlrev_b32 v4, 4, v4
    v_add_u32 v3, v3, v4
    s_mul_i32 s19, s18, {48*512}
    v_add_u32 v5, s19, v3
    s_mul_i32 s19, s18, {128*512}
    v_add_u32 v6, s19, v3
    s_mul_i32 s36, s18, 40960
    """)
    if uniq:
        a(f"s_mul_i32 s19, s15, {32*512}\nv_add_u32 v6, s19, v6")
    cnt = [0]
    def dma(voff, srd, soff):
        slot = cnt[0] % 40
        cnt[0] += 1
        a(f"s_add_u32 m0, s36, {slot*1024}")
        a(f"s_mov_b32 s37, {soff}")
        a(f"buffer_load_dwordx4 {voff}, {srd}, s37 offen {nt} lds")
        a(f"s_waitcnt vmcnt({N})")
    def st(soff):
        a(f"s_mov_b32 s37, {soff}")
        a(f"buffer_store_dwordx4 v[8:11], v5, s[32:35], s37 offen {stf}")
    nch = 512 // chunk
    for c in range(nch):
        for i in range(48 // rpi):
            dma("v5", "s[20:23]", c*chunk + i*rpi*512)
        for i in range(128 // rpi // (4 if uniq else 1)):
            dma("v6", "s[24:27]", c*chunk + i*rpi*512)
        if c == 0:
            a("s_memrealtime s[52:53]")
    a("s_waitcnt vmcnt(0)\ns_memrealtime s[44:45]")
    for c in range(nch):
        for i in range(128 // rpi // (4 if uniq else 1)):
            dma("v6", "s[28:31]", c*chunk + i*rpi*512)
        if stores == "interleave" and c > 0:
            for i in range(48 // rpi): st((c-1)*chunk + i*rpi*512)
    a("s_waitcnt vmcnt(0)\ns_memrealtime s[46:47]")
    if stores == "interleave":
        for i in range(48 // rpi): st((nch-1)*chunk + i*rpi*512)
    elif stores == "end":
        for c in range(nch):
            for i in range(48 // rpi): st(c*chunk + i*rpi*512)
    a("s_waitcnt vmcnt(0)\ns_memrealtime s[48:49]\ns_memtime s[50:51]\ns_waitcnt lgkmcnt(0)")
    a(f"""
    s_lshl_b32 s19, s2, 2
    s_add_u32 s19, s19, s18
    s_lshl_b32 s19, s19, 6
    v_mov_b32 v20, s19
    v_mov_b32 v12, s40
    v_mov_b32 v13, s44
    v_mov_b32 v14, s46
    v_mov_b32 v15, s48
    v_mov_b32 v16, s42
    v_mov_b32 v17, s50
    v_mov_b32 v18, s52
    s_getreg_b32 s19, hwreg(HW_REG_XCC_ID)
    v_mov_b32 v19, s19
    v_cmp_eq_u32 vcc, 0, v2
    s_and_saveexec_b64 s[38:39], vcc
    global_store_dwordx4 v20, v[12:15], s[12:13]
    global_store_dwordx4 v20, v[16:19], s[12:13] offset:16
    s_waitcnt vmcnt(0)
    L_end:
    s_endpgm
    """)
    return a.text(lds=lds, nvgpr=nvgpr, accum=min(256,nvgpr))

if __name__ == "__main__":
    V = dict(
      a=dict(),
      st_nt=dict(stf="nt"),
      st_sc1=dict(stf="sc1"),
      st_sc01=dict(stf="sc0 sc1"),
      st_sc01nt=dict(stf="sc0 sc1 nt"),
      n12=dict(N=12, stores="none"), n24=dict(N=24, stores="none"), n39=dict(N=39, stores="none"), n6=dict(N=6, stores="none"),
      uniq=dict(uniq=True, stores="none"), uniqst=dict(uniq=True), uniqst1=dict(uniq=True, stf="sc1"),
      same=dict(same=True, stores="none"),
      small=dict(lds=163840, nvgpr=64, stores="none"),
      ldnt=dict(nt="nt", stores="none"),
      c512=dict(chunk=512, stores="none"), c256=dict(chunk=256, stores="none"), c64=dict(chunk=64, stores="none"),
    )
    for k, kw in V.items():
        open(f"m1_{k}.s", "w").write(gen(**kw))
```

```python
import re, sys
KN = "standalone__gqa_softmax__near_ridge_kernel"
def split(txt):
    head, rest = txt.split(".amdgcn_target", 1)
    m = re.search(r"@launch grid=\((\d+),1,1\) block=\((\d+),1,1\) lds=(\d+)", head)
    body = rest[rest.index(KN + ":\n") + len(KN) + 2: rest.index('.section .rodata')]
    desc = rest[rest.index(".amdhsa_kernel"):]
    return m.groups(), body, desc
def compose(parts, order):
    out = []; sp = {n: split(t) for n, t in parts.items()}
    for n in order:
        g, b, l = sp[n][0]
        out.append(f"; @launch kernel={n}_kernel grid=({g},1,1) block=({b},1,1) lds={l}")
    out.append('.amdgcn_target "amdgcn-amd-amdhsa--gfx950"\n.text')
    for n, (_, body, _) in sp.items():
        body = re.sub(r"\bL_(\w+)", lambda m: f"L{n}_{m.group(1)}", body)
        out.append(f".globl {n}_kernel\n.p2align 8\n.type {n}_kernel,@function\n{n}_kernel:\n{body}")
    out.append('.section .rodata,"a"')
    for n, (_, _, desc) in sp.items():
        out.append(".p2align 6\n" + desc.replace(KN, f"{n}_kernel"))
    return "\n".join(out) + "\n"
if __name__ == "__main__":
    from asmlib import Asm
    import m1
    k = open("k1_c.s").read()
    a = Asm(); a("s_endpgm"); empty = a.text(lds=0, nvgpr=32, accum=32)
    t = m1.gen(uniq=True, stores="none")
    i = t.index("s_waitcnt vmcnt(0)\n    s_memrealtime s[48:49]"); j = t.index("L_end:")
    pf = t[:i] + "s_waitcnt vmcnt(0)\n" + t[j:]
    a = Asm()
    a("""
    s_cmp_ge_u32 s2, 80
    s_cbranch_scc1 L_end
    s_load_dwordx4 s[4:7], s[0:1], 0
    s_load_dwordx4 s[8:11], s[0:1], 16
    s_lshl_b32 s3, s2, 6
    v_add_u32 v1, s3, v0
    v_lshlrev_b32 v1, 12, v1
    s_waitcnt lgkmcnt(0)
    s_mov_b32 s20, s4
    s_mov_b32 s21, s5
    s_mov_b32 s22, 24117248
    s_mov_b32 s23, 0x20000
    s_mov_b32 s24, s6
    s_mov_b32 s25, s7
    s_mov_b32 s26, 16777216
    s_mov_b32 s27, 0x20000
    s_mov_b32 s28, s8
    s_mov_b32 s29, s9
    s_mov_b32 s30, 16777216
    s_mov_b32 s31, 0x20000
    s_mov_b32 s32, s10
    s_mov_b32 s33, s11
    s_mov_b32 s34, 24117248
    s_mov_b32 s35, 0x20000
    buffer_load_dword v2, v1, s[20:23], 0 offen
    buffer_load_dword v3, v1, s[24:27], 0 offen
    buffer_load_dword v4, v1, s[28:31], 0 offen
    buffer_load_dword v5, v1, s[32:35], 0 offen
    s_waitcnt vmcnt(0)
    L_end:
    s_endpgm
    """)
    tlb = a.text(grid=96, block=64, lds=0, nvgpr=32, accum=32).replace("s2, 80", "s2, 96")
    open("l_empty.s", "w").write(compose(dict(e=empty, k=k), ["e", "k"]))
    open("l_pf.s", "w").write(compose(dict(p=pf, k=k), ["p", "k"]))
    open("l_kk.s", "w").write(compose(dict(k=k), ["k", "k"]))
    open("l_tlb.s", "w").write(compose(dict(t=tlb, k=k), ["t", "k"]))
    open("l_k.s", "w").write(compose(dict(k=k), ["k"]))
```
